```python
import torch

def _softmax(x, axis=-1):
    return torch.softmax(x, dim=axis)
def _gelu(x):
    return torch.nn.functional.gelu(x, approximate="tanh")
def _silu(x):
    return torch.nn.functional.silu(x)
def _sigmoid(x):
    return torch.sigmoid(x)
def _layernorm(x, axis=-1, eps=1e-5):
    m = x.mean(dim=axis, keepdim=True)
    v = x.var(dim=axis, keepdim=True, unbiased=False)
    return (x - m) / torch.sqrt(v + eps)
def _scatter_add(tgt, idx, src, axis=0):
    return tgt.clone().index_add_(axis, idx, src)
def _segment_sum(src, seg, n):
    out = torch.zeros((n,) + src.shape[1:], dtype=src.dtype)
    return out.index_add_(0, seg, src)
def _pad(x, pw):
    flat = tuple(v for pair in reversed(pw) for v in pair)
    return torch.nn.functional.pad(x, flat)

kernel_name = 'sequential_preLN__grouped_kv_mqa__dense_activation_silu__prompt'

def setup_inputs():

    _w = (lambda a: (lambda t: t.to(torch.bfloat16) if t.is_floating_point() else t)(torch.as_tensor(a)))
    def _A_setup():
        B, S, D, H = 1, 2048, 640, 32
        Dh = D // H
        return {
            "x": _w((lambda *s: torch.randn(*s, dtype=torch.bfloat16) * 0.05)(B, S, D)),
            "wq": _w((lambda *s: torch.randn(*s, dtype=torch.bfloat16) * 0.05)(D, H * Dh)),
            "wk": _w((lambda *s: torch.randn(*s, dtype=torch.bfloat16) * 0.05)(D, Dh)),
            "wv": _w((lambda *s: torch.randn(*s, dtype=torch.bfloat16) * 0.05)(D, Dh)),
            "wo": _w((lambda *s: torch.randn(*s, dtype=torch.bfloat16) * 0.05)(H * Dh, D)),
        }
    _A_in = _A_setup()

    def _B_setup():
        B, S, D, F = 1, 2048, 640, 1728
        return {
            "x": _w((lambda *s: torch.randn(*s, dtype=torch.bfloat16) * 0.05)(B, S, D)),
            "w1": _w((lambda *s: torch.randn(*s, dtype=torch.bfloat16) * 0.8)(D, F) * (D ** -0.5)),
            "w2": _w((lambda *s: torch.randn(*s, dtype=torch.bfloat16) * 0.8)(F, D) * (F ** -0.5)),
        }
    _B_in = _B_setup()

    return {
        "A_x": _A_in["x"],
        "A_wq": _A_in["wq"],
        "A_wk": _A_in["wk"],
        "A_wv": _A_in["wv"],
        "A_wo": _A_in["wo"],
        "B_x": _B_in["x"],
        "B_w1": _B_in["w1"],
        "B_w2": _B_in["w2"],
    }

def reference(A_x, A_wq, A_wk, A_wv, A_wo, B_x, B_w1, B_w2):
    def _A_ref(x, wq, wk, wv, wo):
        B, S, D = x.shape
        H = 32
        Dh = D // H
        q = (lambda x, *d: x.permute(*d))((x @ wq).reshape(B, S, H, Dh), 0, 2, 1, 3)
        k = x @ wk
        v = x @ wv
        scores = torch.einsum("bhqd,bkd->bhqk", q, k) * (Dh ** -0.5)
        p = _softmax(scores, axis=-1)
        o = torch.einsum("bhqk,bkd->bhqd", p, v)
        return (lambda x, *d: x.permute(*d))(o, 0, 2, 1, 3).reshape(B, S, H * Dh) @ wo

    def _B_ref(x, w1, w2):
        h = torch.einsum("bsd,df->bsf", x, w1)
        h = _silu(h)
        out = torch.einsum("bsf,fd->bsd", h, w2)
        return out

    x = A_x
    h = x + _A_ref(_layernorm(x, axis=-1), A_wq, A_wk, A_wv, A_wo)
    h2 = h + _B_ref(_layernorm(h, axis=-1), B_w1, B_w2)
    return h2
```

```python
import sys, math

NAME = "sequential_preLN__grouped_kv_mqa__dense_activation_silu__prompt"

WS_Q   = 0
WS_KV  = 0x280000
WS_KN  = WS_KV + 163840
WS_O   = 0x300000
WS_H   = 0x580000
WS_F   = 0x800000
WS_END = 0x800000 + 128 * 54 * 1024
WS_SIZE = 0x1000000

QSCALE = (20 ** -0.5) * math.log2(math.e)

import struct
def f32(x):
    return "0x%08x" % struct.unpack("<I", struct.pack("<f", x))[0]

class Asm:
    def __init__(self):
        self.l = []
    def __call__(self, s):
        for line in s.strip("\n").split("\n"):
            self.l.append("    " + line.strip())
    def label(self, s):
        self.l.append(s + ":")
    def raw(self, s):
        self.l.append(s)
    def text(self):
        return "\n".join(self.l) + "\n"

def vr(a, n=1):
    return f"v{a}" if n == 1 else f"v[{a}:{a+n-1}]"
def sr(a, n=1):
    return f"s{a}" if n == 1 else f"s[{a}:{a+n-1}]"

def kernel_header(a, name):
    a.raw(".text")
    a.raw(f".globl {name}")
    a.raw(".p2align 8")
    a.raw(f".type {name},@function")
    a.label(name)

def kernel_desc(a, name, vgpr, sgpr=102):
    acc = (vgpr + 3) // 4 * 4
    a.raw('.section .rodata,"a"')
    a.raw(".p2align 6")
    a.raw(f".amdhsa_kernel {name}")
    a.raw(f"  .amdhsa_next_free_vgpr {vgpr}")
    a.raw(f"  .amdhsa_next_free_sgpr {sgpr}")
    a.raw(f"  .amdhsa_accum_offset {acc}")
    a.raw("  .amdhsa_group_segment_fixed_size 0")
    a.raw("  .amdhsa_kernarg_size 88")
    a.raw("  .amdhsa_user_sgpr_count 2")
    a.raw("  .amdhsa_user_sgpr_kernarg_segment_ptr 1")
    a.raw("  .amdhsa_system_sgpr_workgroup_id_x 1")
    a.raw(".end_amdhsa_kernel")

def srd(a, d, base, nbytes):
    a(f"s_mov_b32 s{d}, s{base}")
    a(f"s_mov_b32 s{d+1}, s{base+1}")
    a(f"s_mov_b32 s{d+2}, {nbytes}")
    a(f"s_mov_b32 s{d+3}, 0x00020000")

def magic_div(d, maxc):
    for sh in range(8, 20):
        m = ((1 << sh) + d - 1) // d
        if all((c * m) >> sh == c // d for c in range(maxc)) and m * maxc < (1 << 24):
            return m, sh
    raise Exception("no magic")

def sum_groups(a, x, t):
    a(f"v_mov_b32 v{t}, v{x}")
    a("s_nop 1")
    a(f"v_permlane16_swap_b32 v{x}, v{t}")
    a("s_nop 1")
    a(f"v_add_f32 v{x}, v{x}, v{t}")
    a(f"v_mov_b32 v{t}, v{x}")
    a("s_nop 1")
    a(f"v_permlane32_swap_b32 v{x}, v{t}")
    a("s_nop 1")
    a(f"v_add_f32 v{x}, v{x}, v{t}")

def max_row16(a, x, t):
    for mod in ("quad_perm:[1,0,3,2]", "quad_perm:[2,3,0,1]", "row_half_mirror", "row_mirror"):
        a("s_nop 1")
        a(f"v_max_f32_dpp v{x}, v{x}, v{x} {mod} row_mask:0xf bank_mask:0xf")

def max_groups(a, x, t):
    a(f"v_mov_b32 v{t}, v{x}")
    a("s_nop 1")
    a(f"v_permlane16_swap_b32 v{x}, v{t}")
    a("s_nop 1")
    a(f"v_max_f32 v{x}, v{x}, v{t}")
    a(f"v_mov_b32 v{t}, v{x}")
    a("s_nop 1")
    a(f"v_permlane32_swap_b32 v{x}, v{t}")
    a("s_nop 1")
    a(f"v_max_f32 v{x}, v{x}, v{t}")

KA = dict(x=0, wq=8, wk=16, wv=24, wo=32, bx=40, w1=48, w2=56, out=64, dbg=72, ws=80)

def gemm(a, kind):
    name = {"A": "qkv_kernel", "C": "oproj_kernel", "D": "ffn1_kernel", "E": "ffn2_kernel"}[kind]
    MTW = 2 if kind == "D" else 1
    NTW = 7 if kind == "D" else 5
    NT = NTW + (1 if kind == "A" else 0)
    K = 1728 if kind == "E" else 640
    KS = K // 32
    NST = K // 64
    LN = kind in "AD"
    Wname, WN = {"A": ("wq", 640), "C": ("wo", 640), "D": ("w1", 1728), "E": ("w2", 640)}[kind]
    pitchW = WN * 2
    pitchL = NTW * 32
    ACT_B = MTW * 4 * 2048
    W_B = 64 * pitchL
    KV_B = 2048 if kind == "A" else 0
    STAGE = ACT_B + W_B + KV_B
    S = {"A": 7, "C": 8, "D": 5, "E": 8}[kind]
    CS_LDS = S * STAGE
    LDS = S * STAGE + 512
    cpr = 2 * NTW
    nWchunks = 16 * cpr
    nWi = (nWchunks + 63) // 64
    assert nWchunks % 64 == 32
    G = MTW * 2 + nWi + (1 if kind == "A" else 0)
    assert S * G + 16 < 63

    sW, sRB, sCG = 3, 24, 25
    sACT, sWS, sKV, sAUX, sOUT = 4, 8, 12, 16, 20
    sActOff, sWOff, sKVOff = 26, 27, 28
    sM0, sStage, sSlot, sDelta = 29, 30, 31, 32
    sEF, sEH = 34, 36
    sT0, sT1, sT2, sT3 = 38, 39, 40, 41
    sN0 = 42
    sActOff2 = 43
    sOnes = 44
    sP = 48
    vLane, vT0, vT1, vT2, vT3 = 1, 2, 3, 4, 5
    vActSrc = 6
    vWSrc = 7
    vKVSrc = 11
    vA, vW, vKVr = 12, 13, 14
    vEp = 15
    vOnes = 16
    vStat = 20
    vCS = 24
    vRes = 32
    vG = 42
    vF0 = 44
    FSZ = NT * 4 + MTW * 4
    vF1 = vF0 + FSZ
    vAcc = vF1 + FSZ
    vEnd = vAcc + MTW * NT * 4
    vX = vEnd
    NV = vX + 40
    assert NV <= 256
    def Wf(F, T): return F + T * 4
    def Af(F, m): return F + NT * 4 + m * 4
    def Acc(m, T): return vAcc + (m * NT + T) * 4

    kernel_header(a, name)
    L = name
    a("s_cmp_ge_u32 s2, 256")
    a(f"s_cbranch_scc1 {L}_end")
    a(f"s_load_dwordx2 s[{sP}:{sP+1}], s[0:1], {KA['ws']}")
    a(f"s_load_dwordx2 s[{sP+2}:{sP+3}], s[0:1], {KA[Wname]}")
    if kind in "AC":
        a(f"s_load_dwordx2 s[{sP+4}:{sP+5}], s[0:1], {KA['x']}")
    if kind == "A":
        a(f"s_load_dwordx4 s[{sP+8}:{sP+11}], s[0:1], {KA['wk']}")
    if kind == "E":
        a(f"s_load_dwordx2 s[{sP+4}:{sP+5}], s[0:1], {KA['out']}")
    a(f"v_and_b32 v{vLane}, 63, v0")
    a(f"v_lshrrev_b32 v{vT0}, 6, v0")
    a(f"s_and_b32 s{sT0}, s2, 7")
    a(f"v_readfirstlane_b32 s{sW}, v{vT0}")
    a(f"s_lshr_b32 s{sT1}, s2, 3")
    if kind == "D":
        a(f"s_and_b32 s{sT2}, s{sT0}, 3")
        a(f"s_lshl_b32 s{sT2}, s{sT2}, 2")
        a(f"s_lshr_b32 s{sRB}, s{sT1}, 3")
        a(f"s_add_u32 s{sRB}, s{sRB}, s{sT2}")
        a(f"s_lshr_b32 s{sT2}, s{sT0}, 2")
        a(f"s_lshl_b32 s{sT2}, s{sT2}, 3")
        a(f"s_and_b32 s{sCG}, s{sT1}, 7")
        a(f"s_add_u32 s{sCG}, s{sCG}, s{sT2}")
        a(f"s_mul_i32 s{sN0}, s{sCG}, 7")
        a(f"s_min_u32 s{sN0}, s{sN0}, 101")
    else:
        a(f"s_lshl_b32 s{sT2}, s{sT0}, 2")
        a(f"s_lshr_b32 s{sRB}, s{sT1}, 3")
        a(f"s_add_u32 s{sRB}, s{sRB}, s{sT2}")
        a(f"s_and_b32 s{sCG}, s{sT1}, 7")
        a(f"s_mul_i32 s{sN0}, s{sCG}, 5")
    a(f"s_lshl_b32 s{sT3}, s{sRB}, 2")
    a(f"s_add_u32 s{sT3}, s{sT3}, s{sW}")
    if MTW == 2:
        a(f"s_lshl_b32 s{sT3}, s{sT3}, 1")
    sMT = 45
    a(f"s_mov_b32 s{sMT}, s{sT3}")
    a(f"v_lshrrev_b32 v{vG}, 4, v{vLane}")
    a(f"v_and_b32 v{vT1}, 15, v{vLane}")
    if kind == "A":
        a(f"v_mul_u32_u24 v{vActSrc}, 1280, v{vT1}")
        a(f"v_lshl_add_u32 v{vActSrc}, v{vG}, 4, v{vActSrc}")
        a(f"s_mul_i32 s{sActOff}, s{sMT}, {16*1280}")
    else:
        a(f"v_lshlrev_b32 v{vActSrc}, 4, v{vLane}")
        base = {"C": WS_O, "D": WS_H, "E": WS_F}[kind]
        a(f"s_mul_i32 s{sActOff}, s{sMT}, {KS*1024}")
        a(f"s_add_u32 s{sActOff}, s{sActOff}, {base}")
        if MTW == 2:
            a(f"s_add_u32 s{sActOff2}, s{sActOff}, {KS*1024}")
    a(f"s_lshr_b32 s{sT0}, s{sW}, 1")
    a(f"s_lshl_b32 s{sT0}, s{sT0}, 5")
    a(f"s_and_b32 s{sT1}, s{sW}, 1")
    a(f"s_lshl_b32 s{sT1}, s{sT1}, 2")
    a(f"s_add_u32 s{sT0}, s{sT0}, s{sT1}")
    m, sh = magic_div(cpr, 256)
    a(f"s_mov_b32 s{sT2}, {pitchW}")
    for i in range(nWi):
        a(f"v_add_u32 v{vT0}, {i*64}, v{vLane}")
        a(f"v_mul_u32_u24 v{vT2}, {m}, v{vT0}")
        a(f"v_lshrrev_b32 v{vT2}, {sh}, v{vT2}")
        a(f"v_mul_u32_u24 v{vT3}, {cpr}, v{vT2}")
        a(f"v_sub_u32 v{vT3}, v{vT0}, v{vT3}")
        a(f"v_lshrrev_b32 v{vT0}, 2, v{vT2}")
        a(f"v_and_b32 v{vT2}, 3, v{vT2}")
        a(f"v_lshl_add_u32 v{vT2}, v{vT0}, 3, v{vT2}")
        a(f"v_add_u32 v{vT2}, s{sT0}, v{vT2}")
        a(f"v_mul_lo_u32 v{vT2}, v{vT2}, s{sT2}")
        a(f"v_lshl_add_u32 v{vWSrc+i}, v{vT3}, 4, v{vT2}")
    a(f"s_lshl_b32 s{sWOff}, s{sN0}, 5")
    if kind == "A":
        a(f"v_lshrrev_b32 v{vT2}, 1, v{vLane}")
        a(f"v_lshrrev_b32 v{vT0}, 2, v{vT2}")
        a(f"v_and_b32 v{vT2}, 3, v{vT2}")
        a(f"v_lshl_add_u32 v{vT2}, v{vT0}, 3, v{vT2}")
        a(f"v_add_u32 v{vT2}, s{sT0}, v{vT2}")
        a(f"v_mul_u32_u24 v{vT2}, 40, v{vT2}")
        a(f"v_and_b32 v{vT3}, 1, v{vLane}")
        a(f"v_lshl_add_u32 v{vKVSrc}, v{vT3}, 4, v{vT2}")
        a(f"s_and_b32 s{sKVOff}, s{sCG}, 1")
        a(f"s_lshl_b32 s{sKVOff}, s{sKVOff}, 3")
    a(f"s_mul_i32 s{sT0}, s{sW}, {MTW*2048}")
    a(f"v_lshlrev_b32 v{vA}, 4, v{vLane}")
    a(f"v_add_u32 v{vA}, s{sT0}, v{vA}")
    a(f"v_lshrrev_b32 v{vT0}, 2, v{vLane}")
    a(f"v_and_b32 v{vT2}, 3, v{vLane}")
    a(f"v_lshlrev_b32 v{vT2}, 3, v{vT2}")
    a(f"v_mul_u32_u24 v{vW}, {pitchL}, v{vT0}")
    a(f"v_add_u32 v{vW}, v{vW}, v{vT2}")
    if kind == "A":
        a(f"v_lshl_add_u32 v{vKVr}, v{vT0}, 5, v{vT2}")
    vEpP, vEpR = vEp, 43
    a(f"v_lshrrev_b32 v{vT0}, 1, v{vG}")
    a(f"v_lshlrev_b32 v{vT0}, 8, v{vT0}")
    a(f"v_lshl_add_u32 v{vT0}, v{vT1}, 4, v{vT0}")
    a(f"v_and_b32 v{vT2}, 1, v{vG}")
    a(f"v_lshl_add_u32 v{vEpP}, v{vT2}, 3, v{vT0}")
    a(f"v_mul_u32_u24 v{vEpR}, 1280, v{vT1}")
    a(f"v_lshl_add_u32 v{vEpR}, v{vG}, 3, v{vEpR}")
    a("s_waitcnt lgkmcnt(0)")
    srd(a, sWS, sP + 2, K * pitchW)
    if kind == "A":
        srd(a, sACT, sP + 4, 2048 * 1280)
        a(f"s_bitcmp1_b32 s{sCG}, 1")
        a(f"s_cselect_b32 s{sKV}, s{sP+10}, s{sP+8}")
        a(f"s_cselect_b32 s{sKV+1}, s{sP+11}, s{sP+9}")
        a(f"s_mov_b32 s{sKV+2}, {640*40}")
        a(f"s_mov_b32 s{sKV+3}, 0x00020000")
        srd(a, sOUT, sP, WS_SIZE)
    else:
        srd(a, sACT, sP, WS_SIZE)
        if kind == "C":
            srd(a, sAUX, sP + 4, 2048 * 1280)
        if kind == "E":
            srd(a, sOUT, sP + 4, 2048 * 1280)
    sEpOffP, sEpOffR = 46, 47
    a(f"s_lshl_b32 s{sT0}, s{sN0}, 9")
    a(f"s_mul_i32 s{sEpOffR}, s{sMT}, {16*1280}")
    a(f"s_lshl_b32 s{sT1}, s{sN0}, 5")
    a(f"s_add_u32 s{sEpOffR}, s{sEpOffR}, s{sT1}")
    if kind in "CE":
        a(f"s_mul_i32 s{sEpOffP}, s{sMT}, {20*1024}")
        a(f"s_add_u32 s{sEpOffP}, s{sEpOffP}, s{sT0}")
        a(f"s_add_u32 s{sEpOffP}, s{sEpOffP}, {WS_H}")
    elif kind == "D":
        a(f"s_mul_i32 s{sEpOffP}, s{sMT}, {54*1024}")
        a(f"s_add_u32 s{sEpOffP}, s{sEpOffP}, s{sT0}")
        a(f"s_add_u32 s{sEpOffP}, s{sEpOffP}, {WS_F}")
    if kind == "C":
        for T in range(NTW):
            a(f"buffer_load_dwordx2 v[{vRes+2*T}:{vRes+2*T+1}], v{vEpR}, s[{sAUX}:{sAUX+3}], s{sEpOffR} offen offset:{T*32}")
    if kind == "E":
        for T in range(NTW):
            a(f"buffer_load_dwordx2 v[{vRes+2*T}:{vRes+2*T+1}], v{vEpP}, s[{sACT}:{sACT+3}], s{sEpOffP} offen offset:{T*512}")

    sLA, sLW, sLK = 64, 65, 66
    a(f"s_mul_i32 s{sLA}, s{sW}, {MTW*2048}")
    a(f"s_mul_i32 s{sLW}, s{sW}, {16*pitchL}")
    a(f"s_add_u32 s{sLW}, s{sLW}, {ACT_B}")
    if kind == "A":
        a(f"s_lshl_b32 s{sLK}, s{sW}, 9")
        a(f"s_add_u32 s{sLK}, s{sLK}, {ACT_B+W_B}")

    def dma_group():
        a(f"s_mov_b64 exec, s[{sEF}:{sEF+1}]")
        a(f"s_add_u32 m0, s{sM0}, s{sLA}")
        if kind == "A":
            a(f"s_add_u32 s{sT0}, s{sM0}, s{sLW}")
            a(f"buffer_load_dwordx4 v{vActSrc}, s[{sACT}:{sACT+3}], s{sActOff} offen lds")
            a(f"s_add_u32 m0, m0, {1024-64}")
            a("s_nop 0")
            a(f"buffer_load_dwordx4 v{vActSrc}, s[{sACT}:{sACT+3}], s{sActOff} offen offset:64 lds")
            a(f"s_add_u32 s{sActOff}, s{sActOff}, 128")
        else:
            a(f"s_add_u32 s{sT0}, s{sM0}, s{sLW}")
            a(f"buffer_load_dwordx4 v{vActSrc}, s[{sACT}:{sACT+3}], s{sActOff} offen lds")
            a(f"buffer_load_dwordx4 v{vActSrc}, s[{sACT}:{sACT+3}], s{sActOff} offen offset:1024 lds")
            a(f"s_add_u32 s{sActOff}, s{sActOff}, 2048")
            if MTW == 2:
                a(f"s_add_u32 m0, m0, 2048")
                a("s_nop 0")
                a(f"buffer_load_dwordx4 v{vActSrc}, s[{sACT}:{sACT+3}], s{sActOff2} offen lds")
                a(f"buffer_load_dwordx4 v{vActSrc}, s[{sACT}:{sACT+3}], s{sActOff2} offen offset:1024 lds")
                a(f"s_add_u32 s{sActOff2}, s{sActOff2}, 2048")
        for i in range(nWi):
            if i == 0:
                a(f"s_mov_b32 m0, s{sT0}")
            else:
                a(f"s_add_u32 m0, m0, 1024")
            if i == nWi - 1:
                a(f"s_mov_b64 exec, s[{sEH}:{sEH+1}]")
            else:
                a("s_nop 0")
            a(f"buffer_load_dwordx4 v{vWSrc+i}, s[{sWS}:{sWS+3}], s{sWOff} offen lds")
        a(f"s_add_u32 s{sWOff}, s{sWOff}, {64*pitchW}")
        if kind == "A":
            a(f"s_add_u32 m0, s{sM0}, s{sLK}")
            a("s_nop 0")
            a(f"buffer_load_dwordx4 v{vKVSrc}, s[{sKV}:{sKV+3}], s{sKVOff} offen lds")
            a(f"s_add_u32 s{sKVOff}, s{sKVOff}, {64*40}")
        a("s_mov_b64 exec, -1")

    a(f"s_mov_b64 s[{sEF}:{sEF+1}], -1")
    a(f"s_mov_b32 s{sEH}, -1")
    a(f"s_mov_b32 s{sEH+1}, 0")
    a(f"s_mov_b32 s{sM0}, 0")
    a.label(f"{L}_pro")
    dma_group()
    a(f"s_add_u32 s{sM0}, s{sM0}, {STAGE}")
    a(f"s_cmp_lt_u32 s{sM0}, {S*STAGE}")
    a(f"s_cbranch_scc1 {L}_pro")
    a(f"s_mov_b32 s{sM0}, 0")
    a(f"s_mov_b32 s{sStage}, 0")
    for r in range(vAcc, vEnd):
        a(f"v_mov_b32 v{r}, 0")
    if LN:
        a(f"s_mov_b32 s{sOnes}, 0x3f803f80")
        for r in range(4):
            a(f"v_mov_b32 v{vOnes+r}, s{sOnes}")
        for r in range(vStat, vStat + 4):
            a(f"v_mov_b32 v{r}, 0")
        for r in range(vCS, vCS + 8):
            a(f"v_mov_b32 v{r}, 0")

    def reads(F, kk):
        for mm in range(MTW):
            a(f"ds_read_b128 v[{Af(F,mm)}:{Af(F,mm)+3}], v{vA} offset:{(mm*2+kk)*1024}")
        for T in range(NTW):
            for h in range(2):
                off = ACT_B + kk * 32 * pitchL + h * 16 * pitchL + T * 32
                a(f"ds_read_b64_tr_b16 v[{Wf(F,T)+2*h}:{Wf(F,T)+2*h+1}], v{vW} offset:{off}")
        if kind == "A":
            for h in range(2):
                off = ACT_B + W_B + kk * 1024 + h * 512
                a(f"ds_read_b64_tr_b16 v[{Wf(F,NTW)+2*h}:{Wf(F,NTW)+2*h+1}], v{vKVr} offset:{off}")

    def mfmas(F, tag):
        stat = []
        if LN:
            for mm in range(MTW):
                for r in range(4):
                    stat.append(f"v_dot2_f32_bf16 v{vStat+2*mm}, v{Af(F,mm)+r}, s{sOnes}, v{vStat+2*mm}")
                    stat.append(f"v_dot2_f32_bf16 v{vStat+2*mm+1}, v{Af(F,mm)+r}, v{Af(F,mm)+r}, v{vStat+2*mm+1}")
        for T in range(NT):
            for mm in range(MTW):
                a(f"v_mfma_f32_16x16x32_bf16 v[{Acc(mm,T)}:{Acc(mm,T)+3}], v[{Wf(F,T)}:{Wf(F,T)+3}], v[{Af(F,mm)}:{Af(F,mm)+3}], v[{Acc(mm,T)}:{Acc(mm,T)+3}]")
                for _ in range(2):
                    if stat:
                        a(stat.pop(0))
        assert not stat
        if LN:
            a(f"s_bitcmp1_b32 s{sW}, 1")
            a(f"s_cbranch_scc1 {L}_cs{tag}_hi")
            a(f"s_bitcmp1_b32 s{sW}, 0")
            a(f"s_cbranch_scc1 {L}_cs{tag}_1")
            for w in range(4):
                if w == 1: a.label(f"{L}_cs{tag}_1")
                if w == 2:
                    a.label(f"{L}_cs{tag}_hi")
                    a(f"s_bitcmp1_b32 s{sW}, 0")
                    a(f"s_cbranch_scc1 {L}_cs{tag}_3")
                if w == 3: a.label(f"{L}_cs{tag}_3")
                for j, T in enumerate((w, w + 4)):
                    if T < NT:
                        a(f"v_mfma_f32_16x16x32_bf16 v[{vCS+4*j}:{vCS+4*j+3}], v[{Wf(F,T)}:{Wf(F,T)+3}], v[{vOnes}:{vOnes+3}], v[{vCS+4*j}:{vCS+4*j+3}]")
                if w < 3:
                    a(f"s_branch {L}_cs{tag}_e")
            a.label(f"{L}_cs{tag}_e")

    a(f"s_waitcnt vmcnt({(S-1)*G})")
    a("s_barrier")
    reads(vF0, 0)
    a.label(f"{L}_loop")
    a("s_waitcnt lgkmcnt(0)")
    reads(vF1, 1)
    mfmas(vF0, "a")
    a(f"s_add_u32 s{sT1}, s{sStage}, {S}")
    a(f"s_cmp_lt_u32 s{sT1}, {NST}")
    a(f"s_cselect_b64 s[{sEF}:{sEF+1}], -1, 1")
    a(f"s_cselect_b32 s{sEH}, -1, 1")
    a(f"s_add_u32 s{sT2}, s{sM0}, {STAGE}")
    a(f"s_cmp_eq_u32 s{sT2}, {S*STAGE}")
    a(f"s_cselect_b32 s{sT2}, 0, s{sT2}")
    a(f"s_sub_u32 s{sDelta}, s{sT2}, s{sM0}")
    a(f"s_waitcnt vmcnt({(S-2)*G}) lgkmcnt(0)")
    a("s_barrier")
    a(f"v_add_u32 v{vA}, s{sDelta}, v{vA}")
    a(f"v_add_u32 v{vW}, s{sDelta}, v{vW}")
    if kind == "A":
        a(f"v_add_u32 v{vKVr}, s{sDelta}, v{vKVr}")
    reads(vF0, 0)
    dma_group()
    a(f"s_mov_b32 s{sM0}, s{sT2}")
    mfmas(vF1, "b")
    a(f"s_add_u32 s{sStage}, s{sStage}, 1")
    a(f"s_cmp_lt_u32 s{sStage}, {NST}")
    a(f"s_cbranch_scc1 {L}_loop")
    a("s_nop 7")
    a("s_nop 7")

    vMean, vRstd = vX, vX + 2
    vTm = vX + 4
    if LN:
        a(f"s_lshl_b32 s{sT0}, s{sW}, 6")
        a(f"s_add_u32 s{sT0}, s{sT0}, {CS_LDS}")
        a(f"v_lshlrev_b32 v{vT0}, 4, v{vG}")
        a(f"v_add_u32 v{vT2}, s{sT0}, v{vT0}")
        a(f"v_add_u32 v{vT0}, {CS_LDS}, v{vT0}")
        a(f"ds_write_b128 v{vT2}, v[{vCS}:{vCS+3}]")
        a(f"ds_write_b128 v{vT2}, v[{vCS+4}:{vCS+7}] offset:256")
        for mm in range(MTW):
            sum_groups(a, vStat + 2 * mm, vTm)
            sum_groups(a, vStat + 2 * mm + 1, vTm)
            a(f"v_mul_f32 v{vMean+mm}, {f32(1.0/640)}, v{vStat+2*mm}")
            a(f"v_mul_f32 v{vTm}, {f32(1.0/640)}, v{vStat+2*mm+1}")
            a(f"v_fma_f32 v{vTm}, -v{vMean+mm}, v{vMean+mm}, v{vTm}")
            a(f"v_max_f32 v{vTm}, 0, v{vTm}")
            a(f"v_add_f32 v{vTm}, {f32(1e-5)}, v{vTm}")
            a(f"v_rsq_f32 v{vRstd+mm}, v{vTm}")
        a("s_waitcnt lgkmcnt(0)")
        a("s_barrier")
        for T in range(NT):
            a(f"ds_read_b128 v[{vF0+4*T}:{vF0+4*T+3}], v{vT0} offset:{T*64}")
        if kind == "A":
            a(f"v_mul_f32 v{vRstd+1}, {f32(QSCALE)}, v{vRstd}")
        a("s_waitcnt lgkmcnt(0)")

    def lnfold(mm, T, rs):
        for r in range(4):
            a(f"v_fma_f32 v{Acc(mm,T)+r}, -v{vMean+mm}, v{vF0+4*T+r}, v{Acc(mm,T)+r}")
        for r in range(4):
            a(f"v_mul_f32 v{Acc(mm,T)+r}, v{rs}, v{Acc(mm,T)+r}")

    def pack(mm, T, d):
        a(f"v_cvt_pk_bf16_f32 v{d}, v{Acc(mm,T)}, v{Acc(mm,T)+1}")
        a(f"v_cvt_pk_bf16_f32 v{d+1}, v{Acc(mm,T)+2}, v{Acc(mm,T)+3}")

    if kind in "CE":
        for T in range(NTW):
            for hf in range(2):
                a(f"v_lshlrev_b32 v{vTm}, 16, v{vRes+2*T+hf}")
                a(f"v_and_b32 v{vTm+1}, 0xffff0000, v{vRes+2*T+hf}")
                a(f"v_add_f32 v{Acc(0,T)+2*hf}, v{Acc(0,T)+2*hf}, v{vTm}")
                a(f"v_add_f32 v{Acc(0,T)+2*hf+1}, v{Acc(0,T)+2*hf+1}, v{vTm+1}")
            pack(0, T, vRes + 2 * T)
            if kind == "C":
                a(f"buffer_store_dwordx2 v[{vRes+2*T}:{vRes+2*T+1}], v{vEpP}, s[{sACT}:{sACT+3}], s{sEpOffP} offen offset:{T*512}")
            else:
                a(f"buffer_store_dwordx2 v[{vRes+2*T}:{vRes+2*T+1}], v{vEpR}, s[{sOUT}:{sOUT+3}], s{sEpOffR} offen offset:{T*32}")
    elif kind == "D":
        a(f"s_add_u32 s{sT1}, s{sEpOffP}, {54*1024}")
        k = 0
        for mm in range(MTW):
            for T in range(NTW):
                lnfold(mm, T, vRstd + mm)
                for r in range(4):
                    a(f"v_mul_f32 v{vTm+r}, {f32(-math.log2(math.e))}, v{Acc(mm,T)+r}")
                for r in range(4):
                    a(f"v_exp_f32 v{vTm+r}, v{vTm+r}")
                for r in range(4):
                    a(f"v_add_f32 v{vTm+r}, 1.0, v{vTm+r}")
                for r in range(4):
                    a(f"v_rcp_f32 v{vTm+r}, v{vTm+r}")
                a("s_nop 0")
                for r in range(4):
                    a(f"v_mul_f32 v{Acc(mm,T)+r}, v{Acc(mm,T)+r}, v{vTm+r}")
                d = vTm + 4 + 2 * (k % 8); k += 1
                pack(mm, T, d)
                so = sEpOffP if mm == 0 else sT1
                a(f"buffer_store_dwordx2 v[{d}:{d+1}], v{vEpP}, s[{sACT}:{sACT+3}], s{so} offen offset:{T*512}")
    elif kind == "A":
        for T in range(NTW):
            lnfold(0, T, vRstd + 1)
            d = vTm + 4 + 2 * T
            pack(0, T, d)
            a(f"buffer_store_dwordx2 v[{d}:{d+1}], v{vEpR}, s[{sOUT}:{sOUT+3}], s{sEpOffR} offen offset:{T*32}")
        a(f"s_cmp_ge_u32 s{sCG}, 4")
        a(f"s_cbranch_scc1 {L}_fin")
        T = NTW
        lnfold(0, T, vRstd)
        d = vTm + 16
        pack(0, T, d)
        a(f"s_lshr_b32 s{sT0}, s{sMT}, 1")
        a(f"s_mul_i32 s{sT0}, s{sT0}, 2560")
        a(f"s_add_u32 s{sT0}, s{sT0}, {WS_KV}")
        a(f"s_and_b32 s{sT1}, s{sMT}, 1")
        a(f"v_and_b32 v{vT1}, 15, v{vLane}")
        a(f"s_bitcmp1_b32 s{sCG}, 1")
        a(f"s_cbranch_scc1 {L}_v")
        AK = Acc(0, T)
        a(f"v_mul_f32 v{vTm}, v{AK}, v{AK}")
        for r in range(1, 4):
            a(f"v_fmac_f32 v{vTm}, v{AK+r}, v{AK+r}")
        a(f"s_lshl_b32 s{sT2}, s{sMT}, 2")
        a(f"s_add_u32 s{sT2}, s{sT2}, {WS_KN}")
        a(f"v_mov_b32 v{vT3}, 0")
        a(f"s_bitcmp1_b32 s{sCG}, 0")
        a(f"s_cbranch_scc1 {L}_khi")
        a(f"s_lshl_b32 s{sT1}, s{sT1}, 8")
        a(f"s_add_u32 s{sT0}, s{sT0}, s{sT1}")
        a(f"v_lshrrev_b32 v{vT0}, 1, v{vG}")
        a(f"v_lshlrev_b32 v{vT0}, 9, v{vT0}")
        a(f"v_lshl_add_u32 v{vT0}, v{vT1}, 4, v{vT0}")
        a(f"v_and_b32 v{vT2}, 1, v{vG}")
        a(f"v_lshl_add_u32 v{vT0}, v{vT2}, 3, v{vT0}")
        a(f"buffer_store_dwordx2 v[{d}:{d+1}], v{vT0}, s[{sOUT}:{sOUT+3}], s{sT0} offen")
        sum_groups(a, vTm, vTm + 1)
        max_row16(a, vTm, vTm + 1)
        a(f"s_mov_b64 exec, 1")
        a(f"buffer_store_dword v{vTm}, v{vT3}, s[{sOUT}:{sOUT+3}], s{sT2} offen")
        a(f"s_branch {L}_fin")
        a.label(f"{L}_khi")
        a(f"s_lshl_b32 s{sT1}, s{sT1}, 7")
        a(f"s_add_u32 s{sT0}, s{sT0}, s{sT1}")
        a(f"v_lshlrev_b32 v{vT0}, 3, v{vT1}")
        max_row16(a, vTm, vTm + 1)
        a(f"s_mov_b32 exec_lo, 0")
        a(f"s_mov_b32 exec_hi, 0xffff0000")
        a(f"buffer_store_dwordx2 v[{d}:{d+1}], v{vT0}, s[{sOUT}:{sOUT+3}], s{sT0} offen offset:1024")
        a(f"s_mov_b32 exec_hi, 0x00010000")
        a(f"buffer_store_dword v{vTm}, v{vT3}, s[{sOUT}:{sOUT+3}], s{sT2} offen offset:512")
        a(f"s_branch {L}_fin")
        a.label(f"{L}_v")
        a(f"s_mul_i32 s{sT1}, s{sT1}, 640")
        a(f"s_add_u32 s{sT0}, s{sT0}, s{sT1}")
        a(f"s_and_b32 s{sT1}, s{sCG}, 1")
        a(f"s_lshl_b32 s{sT1}, s{sT1}, 6")
        a(f"s_add_u32 s{sT0}, s{sT0}, s{sT1}")
        a(f"v_bfe_u32 v{vT0}, v{vT1}, 2, 1")
        a(f"v_mul_u32_u24 v{vT0}, 320, v{vT0}")
        a(f"v_lshl_add_u32 v{vT0}, v{vG}, 6, v{vT0}")
        a(f"v_lshrrev_b32 v{vT2}, 3, v{vT1}")
        a(f"v_lshl_add_u32 v{vT0}, v{vT2}, 3, v{vT0}")
        a(f"v_and_b32 v{vT2}, 3, v{vT1}")
        a(f"v_lshl_add_u32 v{vT0}, v{vT2}, 1, v{vT0}")
        a(f"buffer_store_short v{d}, v{vT0}, s[{sOUT}:{sOUT+3}], s{sT0} offen offset:1280")
        a(f"buffer_store_short_d16_hi v{d}, v{vT0}, s[{sOUT}:{sOUT+3}], s{sT0} offen offset:1296")
        a(f"buffer_store_short v{d+1}, v{vT0}, s[{sOUT}:{sOUT+3}], s{sT0} offen offset:1312")
        a(f"buffer_store_short_d16_hi v{d+1}, v{vT0}, s[{sOUT}:{sOUT+3}], s{sT0} offen offset:1328")
        a.label(f"{L}_fin")
    a("s_waitcnt vmcnt(0)")
    a.label(f"{L}_end")
    a("s_endpgm")
    kernel_desc(a, name, NV)
    return dict(name=name, LDS=LDS, threads=256)


def attention(a):
    name = "attn_kernel"
    L = name
    UNR = 4
    sW, sRB, sHG, sHead = 3, 12, 13, 14
    sWS = 4
    sP = 8
    sT0, sT1, sT2 = 15, 16, 17
    sCnt, sPhase = 18, 19
    sVM = 20
    sQOff = 22
    sMT = 23
    vLane, vT0, vT1, vT2, vHH, vL32 = 1, 2, 3, 4, 5, 6
    vAK, vAKb, vAV = 7, 8, 9
    vQa, vQb = 12, 16
    vKa, vKb = 20, 24
    vKN = 26
    vP = 32
    vV = 40
    vB = 64
    vS = 80
    vO = 112
    NV = 128
    kernel_header(a, name)
    a("s_cmp_ge_u32 s2, 256")
    a(f"s_cbranch_scc1 {L}_end")
    a(f"s_load_dwordx2 s[{sP}:{sP+1}], s[0:1], {KA['ws']}")
    a(f"v_and_b32 v{vLane}, 63, v0")
    a(f"v_lshrrev_b32 v{vT0}, 6, v0")
    a(f"s_and_b32 s{sT0}, s2, 7")
    a(f"v_readfirstlane_b32 s{sW}, v{vT0}")
    a(f"s_lshr_b32 s{sT1}, s2, 3")
    a(f"s_lshl_b32 s{sT2}, s{sT0}, 2")
    a(f"s_lshr_b32 s{sRB}, s{sT1}, 3")
    a(f"s_add_u32 s{sRB}, s{sRB}, s{sT2}")
    a(f"s_and_b32 s{sHG}, s{sT1}, 7")
    a(f"s_lshr_b32 s{sT0}, s{sW}, 1")
    a(f"s_lshl_b32 s{sHead}, s{sHG}, 2")
    a(f"s_add_u32 s{sHead}, s{sHead}, s{sT0}")
    a(f"s_and_b32 s{sT0}, s{sW}, 1")
    a(f"s_lshl_b32 s{sMT}, s{sRB}, 1")
    a(f"s_add_u32 s{sMT}, s{sMT}, s{sT0}")
    a(f"s_mul_i32 s{sQOff}, s{sMT}, {32*1280}")
    a(f"s_mul_i32 s{sT0}, s{sHead}, 40")
    a(f"s_add_u32 s{sQOff}, s{sQOff}, s{sT0}")
    a(f"v_lshrrev_b32 v{vHH}, 5, v{vLane}")
    a(f"v_and_b32 v{vL32}, 31, v{vLane}")
    a(f"v_mul_u32_u24 v{vT1}, 1280, v{vL32}")
    a(f"v_lshl_add_u32 v{vT0}, v{vHH}, 4, v{vT1}")
    a(f"v_lshlrev_b32 v{vT2}, 3, v{vLane}")
    a(f"v_lshlrev_b32 v{vAK}, 4, v{vLane}")
    a("s_waitcnt lgkmcnt(0)")
    srd(a, sWS, sP, WS_SIZE)
    a(f"s_mov_b32 s{sT0}, {WS_KN}")
    a(f"buffer_load_dwordx4 v[{vQa}:{vQa+3}], v{vT0}, s[{sWS}:{sWS+3}], s{sQOff} offen")
    a(f"buffer_load_dwordx2 v[{vQb}:{vQb+1}], v{vT1}, s[{sWS}:{sWS+3}], s{sQOff} offen offset:32")
    a(f"buffer_load_dwordx2 v[{vKN}:{vKN+1}], v{vT2}, s[{sWS}:{sWS+3}], s{sT0} offen")
    a(f"buffer_load_dwordx2 v[{vKN+2}:{vKN+3}], v{vT2}, s[{sWS}:{sWS+3}], s{sT0} offen offset:512")
    a(f"s_lshl_b32 s{sT0}, s{sW}, 10")
    a(f"s_add_u32 s{sT1}, s{sT0}, {WS_KV}")
    a(f"s_mov_b32 m0, s{sT0}")
    a(f"s_mov_b32 s{sCnt}, 20")
    a.label(f"{L}_dma")
    a(f"buffer_load_dwordx4 v{vAK}, s[{sWS}:{sWS+3}], s{sT1} offen lds")
    a(f"s_add_u32 s{sT1}, s{sT1}, 8192")
    a(f"s_add_u32 m0, m0, 8192")
    a(f"s_sub_u32 s{sCnt}, s{sCnt}, 1")
    a(f"s_cmp_lg_u32 s{sCnt}, 0")
    a(f"s_cbranch_scc1 {L}_dma")
    a(f"s_mov_b32 s{sVM}, 0x000fffff")
    a(f"s_mov_b32 s{sVM+1}, 0x000fffff")
    a(f"s_mov_b32 s{sT0}, 0x3f803f80")
    for r in range(16):
        a(f"v_mov_b32 v{vV+r}, s{sT0}")
    a("s_waitcnt vmcnt(20)")
    a("s_mov_b32 exec_lo, 0")
    a(f"v_mov_b32 v{vQb}, 0")
    a(f"v_mov_b32 v{vQb+1}, 0")
    a("s_mov_b32 exec_lo, -1")
    a(f"v_max_f32 v{vKN}, v{vKN}, v{vKN+1}")
    a(f"v_max_f32 v{vKN+2}, v{vKN+2}, v{vKN+3}")
    a(f"v_mov_b32 v{vT0}, 0")
    for r in range(4):
        a(f"v_dot2_f32_bf16 v{vT0}, v{vQa+r}, v{vQa+r}, v{vT0}")
    for r in range(2):
        a(f"v_dot2_f32_bf16 v{vT0}, v{vQb+r}, v{vQb+r}, v{vT0}")
    max_row16(a, vKN, vT1)
    max_row16(a, vKN + 2, vT1)
    max_groups(a, vKN, vT1)
    max_groups(a, vKN + 2, vT1)
    a(f"v_mov_b32 v{vT1}, v{vT0}")
    a("s_nop 1")
    a(f"v_permlane32_swap_b32 v{vT0}, v{vT1}")
    a("s_nop 1")
    a(f"v_add_f32 v{vT0}, v{vT0}, v{vT1}")
    a(f"v_add_f32 v{vKN}, v{vKN}, v{vKN+2}")
    a(f"v_mul_f32 v{vT0}, v{vT0}, v{vKN}")
    a(f"v_sqrt_f32 v{vT0}, v{vT0}")
    a("s_nop 0")
    a(f"v_mul_f32 v{vT0}, {f32(-1.02)}, v{vT0}")
    for r in range(16):
        a(f"v_mov_b32 v{vB+r}, v{vT0}")
    a(f"s_mov_b32 s{sPhase}, 0")
    a("s_waitcnt vmcnt(18)")
    a("s_barrier")
    a(f"s_mov_b32 s{sCnt}, 1")
    a.label(f"{L}_start")
    a(f"v_lshlrev_b32 v{vAK}, 4, v{vLane}")
    a(f"v_lshlrev_b32 v{vAKb}, 3, v{vL32}")
    a(f"v_mul_u32_u24 v{vAV}, 320, v{vHH}")
    a(f"v_lshl_add_u32 v{vAV}, v{vL32}, 4, v{vAV}")
    a(f"ds_read_b128 v[{vKa}:{vKa+3}], v{vAK}")
    a(f"ds_read_b64 v[{vKb}:{vKb+1}], v{vAKb} offset:1024")
    for r in range(16):
        a(f"v_mov_b32 v{vO+r}, 0")
    a("s_waitcnt lgkmcnt(0)")
    a(f"v_mfma_f32_32x32x16_bf16 v[{vS}:{vS+15}], v[{vKa}:{vKa+3}], v[{vQa}:{vQa+3}], v[{vB}:{vB+15}]")
    a(f"v_mfma_f32_32x32x8_bf16 v[{vS}:{vS+15}], v[{vKb}:{vKb+1}], v[{vQb}:{vQb+1}], v[{vS}:{vS+15}]")
    a(f"ds_read_b128 v[{vKa}:{vKa+3}], v{vAK} offset:2560")
    a(f"ds_read_b64 v[{vKb}:{vKb+1}], v{vAKb} offset:{2560+1024}")
    a(f"s_mov_b64 exec, s[{sVM}:{sVM+1}]")
    a(f"ds_read_b128 v[{vV}:{vV+3}], v{vAV} offset:1280")
    a(f"ds_read_b128 v[{vV+4}:{vV+7}], v{vAV} offset:1920")
    a("s_mov_b64 exec, -1")
    a("s_nop 7")
    a.label(f"{L}_loop")
    for t in range(UNR):
        Sc = vS + 16 * (t & 1)
        Sn = vS + 16 * ((t + 1) & 1)
        Vc = vV + 8 * (t & 1)
        Vn = vV + 8 * ((t + 1) & 1)
        def e(i): a(f"v_exp_f32 v{Sc+i}, v{Sc+i}")
        def c(j): a(f"v_cvt_pk_bf16_f32 v{vP+j}, v{Sc+2*j}, v{Sc+2*j+1}")
        for i in range(0, 4): e(i)
        a("s_waitcnt lgkmcnt(3)")
        a(f"v_mfma_f32_32x32x16_bf16 v[{Sn}:{Sn+15}], v[{vKa}:{vKa+3}], v[{vQa}:{vQa+3}], v[{vB}:{vB+15}]")
        a(f"ds_read_b128 v[{vKa}:{vKa+3}], v{vAK} offset:{(t+2)*2560}")
        for i in range(4, 8): e(i)
        c(0); c(1)
        a("s_waitcnt lgkmcnt(3)")
        a(f"v_mfma_f32_32x32x8_bf16 v[{Sn}:{Sn+15}], v[{vKb}:{vKb+1}], v[{vQb}:{vQb+1}], v[{Sn}:{Sn+15}]")
        a(f"ds_read_b64 v[{vKb}:{vKb+1}], v{vAKb} offset:{(t+2)*2560+1024}")
        c(2); c(3)
        for i in range(8, 12): e(i)
        a("s_waitcnt lgkmcnt(3)")
        a(f"v_mfma_f32_32x32x16_bf16 v[{vO}:{vO+15}], v[{Vc}:{Vc+3}], v[{vP}:{vP+3}], v[{vO}:{vO+15}]")
        for i in range(12, 16): e(i)
        c(4); c(5); c(6); c(7)
        a(f"s_mov_b64 exec, s[{sVM}:{sVM+1}]")
        a(f"ds_read_b128 v[{Vn}:{Vn+3}], v{vAV} offset:{(t+1)*2560+1280}")
        a(f"ds_read_b128 v[{Vn+4}:{Vn+7}], v{vAV} offset:{(t+1)*2560+1920}")
        a("s_mov_b64 exec, -1")
        if t == UNR - 1:
            a(f"v_add_u32 v{vAK}, {UNR*2560}, v{vAK}")
            a(f"v_add_u32 v{vAKb}, {UNR*2560}, v{vAKb}")
            a(f"v_add_u32 v{vAV}, {UNR*2560}, v{vAV}")
            a(f"s_sub_u32 s{sCnt}, s{sCnt}, 1")
            a(f"s_cmp_lg_u32 s{sCnt}, 0")
        a("s_waitcnt lgkmcnt(4)")
        a(f"v_mfma_f32_32x32x16_bf16 v[{vO}:{vO+15}], v[{Vc+4}:{Vc+7}], v[{vP+4}:{vP+7}], v[{vO}:{vO+15}]")
    a(f"s_cbranch_scc1 {L}_loop")
    a(f"s_cmp_ge_u32 s{sPhase}, 2")
    a(f"s_cbranch_scc1 {L}_done")
    a(f"s_cmp_eq_u32 s{sPhase}, 1")
    a(f"s_cbranch_scc1 {L}_ph2")
    a("s_waitcnt vmcnt(12)")
    a("s_barrier")
    a(f"s_mov_b32 s{sCnt}, 4")
    a(f"s_mov_b32 s{sPhase}, 1")
    a(f"s_branch {L}_loop")
    a.label(f"{L}_ph2")
    a("s_waitcnt vmcnt(0)")
    a("s_barrier")
    a(f"s_mov_b32 s{sCnt}, 11")
    a(f"s_mov_b32 s{sPhase}, 2")
    a(f"s_branch {L}_loop")
    a.label(f"{L}_done")
    a("s_waitcnt lgkmcnt(0)")
    a("s_nop 7")
    a("s_nop 7")
    a(f"v_mov_b32 v{vT0}, v{vO+8}")
    a(f"v_mov_b32 v{vT1}, v{vO+8}")
    a("s_nop 1")
    a(f"v_permlane32_swap_b32 v{vT0}, v{vT1}")
    a(f"s_cmp_eq_u32 s{sPhase}, 3")
    a(f"s_cbranch_scc1 {L}_norm")
    a(f"v_mov_b32 v{vT2}, {f32(2.0**-64)}")
    a(f"v_cmp_nge_f32 vcc, v{vT1}, v{vT2}")
    a("s_nop 4")
    a("s_cmp_eq_u64 vcc, 0")
    a(f"s_cbranch_scc1 {L}_norm")
    a(f"v_lshlrev_b32 v{vAK}, 4, v{vLane}")
    a(f"v_lshlrev_b32 v{vAKb}, 3, v{vL32}")
    a(f"v_mov_b32 v{vT0}, 0xff800000")
    a(f"s_mov_b32 s{sCnt}, 64")
    a.label(f"{L}_mx")
    a(f"ds_read_b128 v[{vKa}:{vKa+3}], v{vAK}")
    a(f"ds_read_b64 v[{vKb}:{vKb+1}], v{vAKb} offset:1024")
    a(f"v_add_u32 v{vAK}, 2560, v{vAK}")
    a(f"v_add_u32 v{vAKb}, 2560, v{vAKb}")
    a("s_waitcnt lgkmcnt(0)")
    a(f"v_mfma_f32_32x32x16_bf16 v[{vS}:{vS+15}], v[{vKa}:{vKa+3}], v[{vQa}:{vQa+3}], 0")
    a(f"v_mfma_f32_32x32x8_bf16 v[{vS}:{vS+15}], v[{vKb}:{vKb+1}], v[{vQb}:{vQb+1}], v[{vS}:{vS+15}]")
    a("s_nop 7")
    a("s_nop 7")
    for r in range(0, 16, 2):
        a(f"v_max3_f32 v{vT0}, v{vS+r}, v{vS+r+1}, v{vT0}")
    a(f"s_sub_u32 s{sCnt}, s{sCnt}, 1")
    a(f"s_cmp_lg_u32 s{sCnt}, 0")
    a(f"s_cbranch_scc1 {L}_mx")
    a(f"v_mov_b32 v{vT1}, v{vT0}")
    a("s_nop 1")
    a(f"v_permlane32_swap_b32 v{vT0}, v{vT1}")
    a("s_nop 1")
    a(f"v_max_f32 v{vT0}, v{vT0}, v{vT1}")
    a(f"v_sub_f32 v{vT0}, 0, v{vT0}")
    for r in range(16):
        a(f"v_mov_b32 v{vB+r}, v{vT0}")
    a(f"s_mov_b32 s{sPhase}, 3")
    a(f"s_mov_b32 s{sCnt}, 16")
    a(f"s_branch {L}_start")
    a.label(f"{L}_norm")
    a("s_nop 1")
    a(f"v_rcp_f32 v{vT1}, v{vT1}")
    a(f"s_mul_i32 s{sT0}, s{sHead}, 5")
    a(f"v_add_u32 v{vT0}, s{sT0}, v{vHH}")
    a(f"v_lshrrev_b32 v{vT2}, 1, v{vT0}")
    a(f"v_lshlrev_b32 v{vT2}, 8, v{vT2}")
    a(f"v_and_b32 v{vT0}, 1, v{vT0}")
    a(f"v_lshl_add_u32 v{vT2}, v{vT0}, 3, v{vT2}")
    a(f"v_and_b32 v{vT0}, 15, v{vLane}")
    a(f"v_lshl_add_u32 v{vT2}, v{vT0}, 4, v{vT2}")
    a(f"v_bfe_u32 v{vT0}, v{vLane}, 4, 1")
    a(f"v_mul_u32_u24 v{vT0}, 20480, v{vT0}")
    a(f"v_add_u32 v{vT2}, v{vT2}, v{vT0}")
    a(f"s_mul_i32 s{sT0}, s{sMT}, {2*20480}")
    a(f"s_add_u32 s{sT0}, s{sT0}, {WS_O}")
    for r in range(12):
        a(f"v_mul_f32 v{vO+r}, v{vO+r}, v{vT1}")
    for q in range(3):
        a(f"v_cvt_pk_bf16_f32 v{vP+2*q}, v{vO+4*q}, v{vO+4*q+1}")
        a(f"v_cvt_pk_bf16_f32 v{vP+2*q+1}, v{vO+4*q+2}, v{vO+4*q+3}")
    for q in range(3):
        if q == 2:
            a("s_mov_b32 exec_hi, 0")
        a(f"buffer_store_dwordx2 v[{vP+2*q}:{vP+2*q+1}], v{vT2}, s[{sWS}:{sWS+3}], s{sT0} offen offset:{q*256}")
    a("s_waitcnt vmcnt(0)")
    a.label(f"{L}_end")
    a("s_endpgm")
    kernel_desc(a, name, NV)
    return dict(name=name, LDS=163840, threads=512)


def main(out):
    a = Asm()
    infos = [gemm(a, "A"), attention(a), gemm(a, "C"), gemm(a, "D"), gemm(a, "E")]
    hdr = open("cdna_kernels/%s.s.ref" % NAME).read().split("; Override")[0]
    for i in infos:
        hdr += f"; @launch kernel={i['name']} grid=(256,1,1) block=({i['threads']},1,1) lds={i['LDS']}\n"
    hdr += '.amdgcn_target "amdgcn-amd-amdhsa--gfx950"\n'
    open(out, "w").write(hdr + a.text())

if __name__ == "__main__":
    main(sys.argv[1] if len(sys.argv) > 1 else "cdna_kernels/%s.s" % NAME)
```
